```python
import torch

def _softmax(x, axis=-1):
    return torch.softmax(x, dim=axis)
def _gelu(x):
    return torch.nn.functional.gelu(x, approximate="tanh")
def _silu(x):
    return torch.nn.functional.silu(x)
def _sigmoid(x):
    return torch.sigmoid(x)
def _layernorm(x, axis=-1, eps=1e-5):
    m = x.mean(dim=axis, keepdim=True)
    v = x.var(dim=axis, keepdim=True, unbiased=False)
    return (x - m) / torch.sqrt(v + eps)
def _scatter_add(tgt, idx, src, axis=0):
    return tgt.clone().index_add_(axis, idx, src)
def _segment_sum(src, seg, n):
    out = torch.zeros((n,) + src.shape[1:], dtype=src.dtype)
    return out.index_add_(0, seg, src)
def _pad(x, pw):
    flat = tuple(v for pair in reversed(pw) for v in pair)
    return torch.nn.functional.pad(x, flat)

kernel_name = 'gated_mix__linear_attn_block__ssm_conv_s5__prompt'

def setup_inputs():

    _w = (lambda a: (lambda t: t.to(torch.bfloat16) if t.is_floating_point() else t)(torch.as_tensor(a)))
    def _A_setup():
        B, S, D = 1, 2048, 512
        return {
            "x": _w((lambda *s: torch.randn(*s, dtype=torch.bfloat16) * 0.05)(B, S, D)),
            "wqkv": _w((lambda *s: torch.randn(*s, dtype=torch.bfloat16) * 0.8)(D, 3 * D)),
            "wo": _w((lambda *s: torch.randn(*s, dtype=torch.bfloat16) * 0.05)(D, D)),
        }
    _A_in = _A_setup()

    def _B_setup():
        B, S, D = 1, 2048, 512
        P = D
        Lambda_re = -0.5 * (lambda _x: torch.exp(torch.as_tensor(_x)))((lambda *s: torch.randn(*s, dtype=torch.bfloat16) * 0.2)(P))
        Lambda_im = (lambda *s: torch.randn(*s, dtype=torch.bfloat16) * 0.8)(P) * 1.0
        B_re = (lambda *s: torch.randn(*s, dtype=torch.bfloat16) * 0.4)(P, D) * (D ** -0.5)
        B_im = (lambda *s: torch.randn(*s, dtype=torch.bfloat16) * 0.4)(P, D) * (D ** -0.5)
        C_re = (lambda *s: torch.randn(*s, dtype=torch.bfloat16) * 0.4)(D, P) * (P ** -0.5)
        C_im = (lambda *s: torch.randn(*s, dtype=torch.bfloat16) * 0.4)(D, P) * (P ** -0.5)
        log_dt = (lambda *s: torch.randn(*s, dtype=torch.bfloat16) * 0.2)(P) * 0.3 - 2.0
        Dskip = (lambda *s: torch.randn(*s, dtype=torch.bfloat16) * 0.05)(D)
        return {
            "x": _w((lambda *s: torch.randn(*s, dtype=torch.bfloat16) * 0.05)(B, S, D)),
            "Lambda_re": _w(Lambda_re),
            "Lambda_im": _w(Lambda_im),
            "B_re": _w(B_re),
            "B_im": _w(B_im),
            "C_re": _w(C_re),
            "C_im": _w(C_im),
            "log_dt": _w(log_dt),
            "Dskip": _w(Dskip),
        }
    _B_in = _B_setup()

    return {
        "A_x": _A_in["x"],
        "A_wqkv": _A_in["wqkv"],
        "A_wo": _A_in["wo"],
        "B_x": _B_in["x"],
        "B_Lambda_re": _B_in["Lambda_re"],
        "B_Lambda_im": _B_in["Lambda_im"],
        "B_B_re": _B_in["B_re"],
        "B_B_im": _B_in["B_im"],
        "B_C_re": _B_in["C_re"],
        "B_C_im": _B_in["C_im"],
        "B_log_dt": _B_in["log_dt"],
        "B_Dskip": _B_in["Dskip"],
        "gate_w": _w((lambda *s: torch.randn(*s, dtype=torch.bfloat16) * 0.05)(512) * 16.0),
    }

def reference(A_x, A_wqkv, A_wo, B_x, B_Lambda_re, B_Lambda_im, B_B_re, B_B_im, B_C_re, B_C_im, B_log_dt, B_Dskip, gate_w):
    def _A_ref(x, wqkv, wo):
        B, S, D = x.shape
        H = 32; Dh = D // H
        qkv = (lambda x, *d: x.permute(*d))((x @ wqkv).reshape(B, S, 3, H, Dh), 2, 0, 3, 1, 4)
        q, k, v = qkv[0], qkv[1], qkv[2]
        phi = lambda t: torch.where(t > 0, t + 1, torch.exp(t)) + 1e-6
        pq, pk = phi(q), phi(k)
        kv = torch.einsum("bhsd,bhse->bhde", pk, v)
        z = torch.einsum("bhsd->bhd", pk)
        num = torch.einsum("bhqd,bhde->bhqe", pq, kv)
        den = torch.einsum("bhqd,bhd->bhq", pq, z)[..., None] + 1e-6
        o = num / den
        return (lambda x, *d: x.permute(*d))(o, 0, 2, 1, 3).reshape(B, S, D) @ wo

    def _B_ref(x, Lambda_re, Lambda_im, B_re, B_im, C_re, C_im, log_dt, Dskip):
        Bsz, L, H = x.shape
        Lam = Lambda_re + 1j * Lambda_im
        Bmat = B_re + 1j * B_im
        Cmat = C_re + 1j * C_im
        dt = torch.exp(log_dt)
        Lam_bar = torch.exp(dt * Lam)
        B_bar = ((Lam_bar - 1.0) / Lam)[:, None] * Bmat
        Bu = torch.einsum("bld,pd->blp", x + 0j, B_bar)
        h = torch.zeros_like(Bu[:, 0, :])
        hs = []
        for t in range(L):
            h = Lam_bar[None, :] * h + Bu[:, t, :]
            hs.append(h)
        hseq = torch.stack(hs, 1)
        y = 2.0 * torch.einsum("blp,dp->bld", hseq, Cmat).real + x * Dskip[None, None, :]
        return y

    x = A_x
    g = _sigmoid((x * gate_w).sum(-1, keepdims=True))
    a = _A_ref(x, A_wqkv, A_wo)
    b = _B_ref(x, B_Lambda_re, B_Lambda_im, B_B_re, B_B_im, B_C_re, B_C_im, B_log_dt, B_Dskip)
    return g * a + (1 - g) * b
```

```python
import re

REG = re.compile(r"^(-?)(?:abs\()?([vas])(?:(\d+)|\[(\d+):(\d+)\])\)?$")

def regs_of(tok):
    tok = tok.strip()
    if tok in ("vcc",): return {("s", 106), ("s", 107)}
    if tok == "vcc_lo": return {("s", 106)}
    if tok == "vcc_hi": return {("s", 107)}
    if tok == "m0": return {("s", 124)}
    if tok == "exec": return {("s", 126), ("s", 127)}
    if tok == "exec_lo": return {("s", 126)}
    if tok == "exec_hi": return {("s", 127)}
    m = REG.match(tok)
    if not m: return set()
    k = m.group(2)
    if m.group(3) is not None: return {(k, int(m.group(3)))}
    return {(k, i) for i in range(int(m.group(4)), int(m.group(5)) + 1)}

TRANS = ("v_exp_f32", "v_log_f32", "v_rcp_f32", "v_rsq_f32", "v_sqrt_f32", "v_sin_f32", "v_cos_f32")

class Ins:
    def __init__(self, text):
        self.text = text
        t = text.split(";")[0].strip()
        sp = t.split(None, 1)
        self.op = sp[0]
        rest = sp[1] if len(sp) > 1 else ""
        ops, depth, cur = [], 0, ""
        for ch in rest:
            if ch in "[(": depth += 1
            if ch in "])": depth -= 1
            if ch == "," and depth == 0:
                ops.append(cur.strip()); cur = ""
            else: cur += ch
        if cur.strip(): ops.append(cur.strip())
        self.mods = ""
        if ops:
            last = ops[-1].split(None, 1)
            ops[-1] = last[0]
            self.mods = last[1] if len(last) > 1 else ""
        self.ops = ops
        op = self.op
        base = re.sub(r"_(e32|e64|dpp|sdwa)$", "", op)
        self.base = base
        R = [regs_of(o) for o in ops]
        U = lambda idx: set().union(*[R[i] for i in idx]) if idx else set()
        n = len(ops)
        self.kind = "other"; self.defs = set(); self.uses = set()
        self.is_lds_dma = False; self.wide_store = set()
        if op.startswith("v_mfma"):
            self.kind = "mfma"; self.defs = R[0]; self.uses = U(range(1, n)); self.srcc = R[3]; self.ab = R[1] | R[2]
            self.passes = 8 if "32x32" in op else (2 if "4x4x4" in op else 4)
        elif op.startswith("v_"):
            self.kind = "valu"; self.defs = set(R[0]); self.uses = U(range(1, n))
            self.dpp = op.endswith("_dpp") or "row_" in self.mods or "quad_perm" in self.mods
            if base in ("v_fmac_f32", "v_pk_fmac_f16", "v_dot2c_f32_bf16", "v_writelane_b32") or self.dpp: self.uses |= R[0]
            if base.startswith("v_permlane") and "swap" in base:
                self.defs = R[0] | R[1]; self.uses = R[0] | R[1]
            if base in ("v_add_co_u32", "v_sub_co_u32", "v_addc_co_u32", "v_subb_co_u32"):
                self.defs = R[0] | R[1]; self.uses = U(range(2, n))
            self.trans = base in TRANS
        elif op.startswith("ds_"):
            self.kind = "ds"
            if "read" in op or "permute" in op or "swizzle" in op:
                self.defs = R[0]; self.uses = U(range(1, n))
            else:
                self.uses = U(range(n))
            if "addtid" in op: self.uses |= {("s", 124)}
        elif op.startswith("buffer_") or op.startswith("global_"):
            self.kind = "vmem"
            lds = re.search(r"\blds\b", self.mods) is not None or "_lds_" in op
            if lds:
                self.is_lds_dma = True; self.uses = U(range(n)) | {("s", 124)}
            elif "load" in op:
                self.defs = R[0]; self.uses = U(range(1, n))
            else:
                self.uses = U(range(n))
                if "x4" in op or "x3" in op:
                    self.wide_store = R[0] if op.startswith("buffer_") else R[1]
        elif op.startswith("s_load") or op.startswith("s_memtime") or op.startswith("s_memrealtime") or op.startswith("s_buffer_load"):
            self.kind = "smem"; self.defs = R[0]; self.uses = U(range(1, n))
        elif op.startswith("s_"):
            self.kind = "salu"
            if op.startswith("s_cmp") or op.startswith("s_cbranch") or op in ("s_waitcnt", "s_nop", "s_barrier", "s_branch", "s_endpgm", "s_sleep", "s_setprio"):
                self.uses = U(range(n))
            else:
                self.defs = set(R[0]) if n else set(); self.uses = U(range(1, n))
                if "saveexec" in op: self.defs |= {("s", 126), ("s", 127)}
        self.states = 1
        if op == "s_nop": self.states = int(ops[0]) + 1

def need_states(p, c):
    n = 0
    vd = {r for r in p.defs if r[0] in "va"}
    sd = {r for r in p.defs if r[0] == "s"}
    if p.kind == "valu":
        if c.kind == "mfma" and vd & c.uses: n = max(n, 2)
        if c.kind == "valu":
            if p.trans and not c.trans and vd & c.uses: n = max(n, 1)
            if p.trans and c.trans and vd & c.uses: n = max(n, 1)
            if (c.base.startswith("v_permlane") or c.dpp) and vd & c.uses: n = max(n, 2)
            if c.base in ("v_readfirstlane_b32", "v_readlane_b32") and vd & c.uses: n = max(n, 1)
            if sd & c.uses: n = max(n, 4 if c.base in ("v_readlane_b32", "v_writelane_b32") else 2)
        if c.kind == "vmem" and sd & c.uses: n = max(n, 5)
        if c.kind in ("salu", "smem") and sd & c.uses: n = max(n, 1)
        if p.trans and c.kind in ("vmem", "ds") and vd & c.uses: n = max(n, 1)
    if p.kind == "mfma":
        big = {8: 12, 4: 8, 2: 6}[p.passes]
        if c.kind == "mfma" and p.passes == 2 and p.defs & c.srcc: n = max(n, 2)
        if c.kind == "mfma":
            if p.defs & c.ab: n = max(n, big)
            if p.defs & c.srcc and not (p.defs == c.srcc and p.passes == c.passes): n = max(n, big - 2)
            if p.defs & c.defs and not (p.defs == c.srcc): n = max(n, big)
        elif c.kind in ("valu", "ds", "vmem"):
            if p.defs & (c.uses | c.defs): n = max(n, big)
            if p.srcc & c.defs: n = max(n, {8: 7, 4: 3, 2: 1}[p.passes])
    if p.kind == "salu" and ("s", 124) in p.defs and ("s", 124) in c.uses and c.kind in ("vmem", "ds"): n = max(n, 1)
    if p.kind == "vmem" and p.wide_store and p.wide_store & c.defs: n = max(n, 2)
    return n

class Prog:
    def __init__(self):
        self.out = []
        self.hist = []
        self.vm = []
        self.lg = []
        self.nops = 0
    def raw(self, s):
        self.out.append(s)
    def comment(self, s):
        self.out.append("; " + s)
    def label(self, name):
        self.out.append(name + ":")
    def _put(self, ins):
        need = 0; dist = 0
        for p in reversed(self.hist):
            if dist >= 20: break
            need = max(need, need_states(p, ins) - dist)
            dist += p.states
        if need > 0:
            self.nops += need
            nop = Ins(f"s_nop {need-1}")
            self.out.append("    " + nop.text); self.hist.append(nop)
        self.out.append("    " + ins.text)
        self.hist.append(ins)
        self.hist = self.hist[-24:]
    def _wait(self, vm=None, lg=None):
        parts = []
        if vm is not None:
            vm = min(vm, 63); parts.append(f"vmcnt({vm})")
            self.vm = self.vm[len(self.vm) - vm:] if vm < len(self.vm) and vm > 0 else ([] if vm == 0 else self.vm)
        if lg is not None:
            lg = min(lg, 15); parts.append(f"lgkmcnt({lg})")
            self.lg = self.lg[len(self.lg) - lg:] if lg < len(self.lg) and lg > 0 else ([] if lg == 0 else self.lg)
        if parts: self._put(Ins("s_waitcnt " + " ".join(parts)))
    def __call__(self, text, tag=None, count=True):
        for line in text.strip().split("\n"):
            line = line.strip()
            if not line or line.startswith(";"): continue
            if line.endswith(":"):
                self.label(line[:-1]); continue
            if line.startswith("."):
                self.raw(line); continue
            ins = Ins(line)
            touch = ins.uses | ins.defs
            vm = lg = None
            for i in range(len(self.vm) - 1, -1, -1):
                if self.vm[i][1] & touch:
                    if ins.kind == "vmem" and not (self.vm[i][1] & ins.uses): continue
                    vm = len(self.vm) - 1 - i; break
            for i in range(len(self.lg) - 1, -1, -1):
                if self.lg[i][1] & touch:
                    lg = len(self.lg) - 1 - i
                    if any(x[2] for x in self.lg): lg = 0
                    break
            if vm is not None or lg is not None: self._wait(vm, lg)
            self._put(ins)
            if ins.kind == "vmem" and count: self.vm.append((tag, ins.defs))
            if ins.kind == "vmem" and not count: assert not ins.defs
            if ins.kind == "ds": self.lg.append((tag, ins.defs, False))
            if ins.kind == "smem": self.lg.append((tag, ins.defs, True))
    def wait_vm(self, tag):
        for i in range(len(self.vm) - 1, -1, -1):
            if self.vm[i][0] == tag:
                self._wait(vm=len(self.vm) - 1 - i); return
    def wait_all(self, vm=False, lg=False):
        self._wait(0 if vm else None, 0 if lg else None)
    def barrier(self, lg=True):
        if lg and self.lg: self._wait(lg=0)
        self._put(Ins("s_barrier"))
    def save(self):
        return (list(self.vm), list(self.lg), list(self.hist))
    def restore(self, st):
        self.vm, self.lg, self.hist = list(st[0]), list(st[1]), list(st[2])
    def text(self):
        return "\n".join(self.out) + "\n"

def v(i, n=1): return f"v{i}" if n == 1 else f"v[{i}:{i+n-1}]"
def a(i, n=1): return f"a{i}" if n == 1 else f"a[{i}:{i+n-1}]"
def s(i, n=1): return f"s{i}" if n == 1 else f"s[{i}:{i+n-1}]"
```

```python
import sys
from gasm import *

KN = "gated_mix__linear_attn_block__ssm_conv_s5__prompt_kernel"

ACT = 0
XR = 0x600000; XR_N = 0xB000; XR_Z = 0x8000; XR_AGG = 0x8800
FLAG = 0x658000
GOFF = 0x678000
STAMP = 0x680000
WS_USED = 0x690000
L_GW = 0; L_GB = 1024; L_EX = 2048
SLOT0 = 32768
LOG2E = 0x3fb8aa3b
EPS = 0x358637bd
SPIN = 1 << 20

class Cfg:
    stamps = False
    rot_mask = 3; rot_up = 1
    out_flags = "sc1"
    def __init__(self, **kw):
        for k, x in kw.items(): setattr(self, k, x)

SX, SW, SWS, SOUT, SWO, SC, SDBG, SAG = 4, 8, 12, 16, 20, 24, 28, 32
KA = 36
def kp(i): return KA + 2 * i
(sM, sN, sTY, sWV, sWR, sWC, sROT, sRB, sCB, sT0, sT1, sT2, sT3, sXB, sWB, sM0, sLEAD, sXR, sCNT, sACT) = range(68, 88)
sMSK = 88
sMS2 = 90
sST = 36

class Gen:
    def __init__(self, cfg):
        self.c = cfg
        self.p = Prog()
        self.fill = []
        self.nst = 0
        self.slow = []

    def stamp(self, i):
        if self.c.stamps:
            self.p(f"s_memrealtime s[92:93]")
            self.p(f"v_writelane_b32 v255, s92, {i}")

    def filler(self, k):
        while k > 0 and self.fill:
            it = self.fill.pop(0)
            if callable(it): it()
            else: self.p(it)
            k -= 1
    def flush_fill(self):
        self.filler(10 ** 9)

    def srd(self, d, ptr, size):
        self.p(f"s_mov_b32 s{d}, s{ptr}\ns_mov_b32 s{d+1}, s{ptr+1}\ns_mov_b32 s{d+2}, {size:#x}\ns_mov_b32 s{d+3}, 0x20000")

    def cmul(self, d, x, y):
        return [f"v_mul_f32 v{d[0]}, v{x[0]}, v{y[0]}", f"v_mul_f32 v{d[1]}, v{x[0]}, v{y[1]}",
                f"v_fma_f32 v{d[0]}, -v{x[1]}, v{y[1]}, v{d[0]}", f"v_fmac_f32 v{d[1]}, v{x[1]}, v{y[0]}"]
    def cfma(self, d, x, y, z):
        return [f"v_fma_f32 v{d[0]}, v{x[0]}, v{y[0]}, v{z[0]}", f"v_fma_f32 v{d[1]}, v{x[0]}, v{y[1]}, v{z[1]}",
                f"v_fma_f32 v{d[0]}, -v{x[1]}, v{y[1]}, v{d[0]}", f"v_fmac_f32 v{d[1]}, v{x[1]}, v{y[0]}"]
    def run(self, lst):
        for x in lst:
            if callable(x): x()
            else: self.p(x)

    vL, vHH, vR, vL16, vSW0, vSW1, vT0, vT1, vT2, vT3 = 0, 1, 2, 3, 4, 5, 6, 7, 8, 9
    vXo, vWo = 10, 14
    vXa, vWa = 18, 26
    vGa, vDbg, vPub, vAct = 34, 35, 36, 37
    vFr = 40
    vAcc = 64
    vGt = 128

    def dma_group(self, voff, srd, m0_expr, soff_expr, tag):
        p = self.p
        items = []
        def first():
            p(m0_expr); p(soff_expr)
            p(f"buffer_load_dwordx4 v{voff}, s[{srd}:{srd+3}], s{sT3} offen lds", tag=tag)
        items.append(first)
        for j in range(1, 4):
            items.append(lambda j=j: p(f"buffer_load_dwordx4 v{voff+j}, s[{srd}:{srd+3}], s{sT3} offen offset:{1024*j} lds", tag=tag))
        return items

    def kb_expr(self, i):
        return f"s_add_u32 s{sT2}, s{sROT}, {i}\ns_and_b32 s{sT2}, s{sT2}, 7\n"

    def stage_dma(self, i, role):
        slot = SLOT0 + (i & 3) * 32768
        it = self.dma_group(self.vXo, SX, f"s_add_u32 m0, s{sM0}, {slot}",
                            self.kb_expr(i) + f"s_lshl_b32 s{sT2}, s{sT2}, 7\ns_add_u32 s{sT3}, s{sT2}, s{sXB}", f"st{i}")
        mul = f"s_lshl_b32 s{sT2}, s{sT2}, 7" if role == "S" else f"s_mul_i32 s{sT2}, s{sT2}, {64*3072}"
        it += self.dma_group(self.vWo, SW, f"s_add_u32 m0, s{sM0}, {slot + 16384}",
                             self.kb_expr(i) + mul + f"\ns_add_u32 s{sT3}, s{sT2}, s{sWB}", f"st{i}")
        return it

    def wq_dma(self, h):
        it = []
        for g in range(2):
            it += self.dma_group(self.vWo, SW, f"s_lshl_b32 s{sT2}, s{sM0}, 1\ns_add_u32 m0, s{sT2}, {SLOT0 + h*32768 + g*4096}",
                                 f"s_add_u32 s{sT2}, s{sROT}, s{sWV}\ns_add_u32 s{sT2}, s{sT2}, {4*h}\ns_and_b32 s{sT2}, s{sT2}, 7\n"
                                 f"s_mul_i32 s{sT2}, s{sT2}, {64*3072}\ns_lshl_b32 s{sT3}, s{sN}, 7\ns_add_u32 s{sT3}, s{sT3}, s{sT2}\n"
                                 + (f"s_add_u32 s{sT3}, s{sT3}, {32*3072}" if g else ""), f"st{8+h}")
        return it

    def wo_dma(self, h, base, voff, tag):
        it = []
        for g in range(2):
            it += self.dma_group(voff, SWO, f"s_lshl_b32 s{sT2}, s{sM0}, 1\ns_add_u32 m0, s{sT2}, {base + h*32768 + g*4096}",
                                 f"s_lshl_b32 s{sT2}, s{sWV}, 16\ns_lshl_b32 s{sT3}, s{sCB}, 7\ns_add_u32 s{sT3}, s{sT3}, s{sT2}\n"
                                 f"s_add_u32 s{sT3}, s{sT3}, {(256*h + 32*g)*1024}", tag)
        return it

    def c_dma(self, H, voff, tag):
        it = []
        for b in range(2):
            for g in range(2):
                it += self.dma_group(voff, SC,
                    f"s_lshl_b32 s{sT2}, s{sWR}, 15\ns_lshl_b32 s{sT3}, s{sWC}, 13\ns_add_u32 s{sT2}, s{sT2}, s{sT3}\n"
                    f"s_add_u32 m0, s{sT2}, {SLOT0 + H*65536 + b*16384 + g*4096}",
                    f"s_lshl_b32 s{sT2}, s{sWR}, 9\ns_lshl_b32 s{sT3}, s{sCB}, 16\ns_add_u32 s{sT3}, s{sT3}, s{sT2}\n"
                    f"s_add_u32 s{sT3}, s{sT3}, {g*32768 + (2*H + b)*128}", tag)
        return it

    def ident_voffs(self, dst, sw, xorj):
        o = [f"v_lshrrev_b32 v{self.vT0}, 3, v{self.vL}", f"v_lshl_add_u32 v{dst}, v{self.vT0}, 10, v{sw}"]
        if xorj:
            o += [f"v_xor_b32 v{dst+1}, 64, v{dst}", f"v_add_u32 v{dst+1}, 7168, v{dst+1}"]
        else:
            o += [f"v_add_u32 v{dst+1}, 7168, v{dst}"]
        o += [f"v_add_u32 v{dst+2}, {2*7168}, v{dst}", f"v_add_u32 v{dst+3}, {2*7168}, v{dst+1}"]
        return o

    def frag_addrs(self, dst, sbase_expr_reg, extra):
        o = [f"v_bfe_u32 v{self.vT0}, v{self.vR}, 1, 3", f"v_xor_b32 v{self.vT0}, v{self.vT0}, v{self.vHH}",
             f"v_lshlrev_b32 v{self.vT0}, 4, v{self.vT0}", f"v_lshl_add_u32 v{self.vT0}, v{self.vR}, 7, v{self.vT0}",
             f"v_add_u32 v{self.vT0}, s{sbase_expr_reg}, v{self.vT0}", f"v_add_u32 v{dst}, {SLOT0 + extra}, v{self.vT0}"]
        for ks in range(1, 4): o.append(f"v_xor_b32 v{dst+ks}, {32*ks}, v{dst}")
        for ks in range(4): o.append(f"v_add_u32 v{dst+4+ks}, 0x10000, v{dst+ks}")
        return o

    def tr_lane(self, dst, hh_rows):
        T0, T1 = self.vT0, self.vT1
        return [f"v_bfe_u32 v{T0}, v{self.vL}, 2, 2", f"v_mad_u32_u24 v{T0}, v{self.vHH}, {hh_rows}, v{T0}",
                f"v_lshlrev_b32 v{dst}, 7, v{T0}",
                f"v_and_b32 v{T0}, 3, v{self.vL}", f"v_lshl_add_u32 v{dst}, v{T0}, 3, v{dst}",
                f"v_bfe_u32 v{T0}, v{self.vL}, 4, 1", f"v_lshl_add_u32 v{dst}, v{T0}, 5, v{dst}",
                f"v_bfe_u32 v{T0}, v{self.vL}, 3, 1", f"v_lshl_add_u32 v{dst}, v{T0}, 6, v{dst}"]

    def prologue(self):
        p, c = self.p, self.c
        p(f"""
        s_cmp_ge_u32 s2, 256
        s_cbranch_scc1 L_end
        s_load_dwordx16 s[{KA}:{KA+15}], s[0:1], 0
        s_load_dwordx16 s[{KA+16}:{KA+31}], s[0:1], 64
        """)
        if c.stamps:
            p("v_mov_b32 v255, 0"); self.stamp(0)
        p(f"""
        v_lshrrev_b32 v1, 6, v0
        v_and_b32 v0, 63, v0
        v_readfirstlane_b32 s{sWV}, v1
        s_lshr_b32 s{sT0}, s2, 3
        s_and_b32 s{sT1}, s2, 1
        s_lshl_b32 s{sT1}, s{sT1}, 3
        s_and_b32 s{sM}, s{sT0}, 7
        s_add_u32 s{sM}, s{sM}, s{sT1}
        s_bfe_u32 s{sTY}, s2, 0x10006
        s_and_b32 s{sN}, s2, 6
        s_lshr_b32 s{sT1}, s2, 7
        s_add_u32 s{sN}, s{sN}, s{sT1}
        s_and_b32 s{sRB}, s2, 7
        s_lshl_b32 s{sRB}, s{sRB}, 2
        s_and_b32 s{sT1}, s{sT0}, 3
        s_add_u32 s{sRB}, s{sRB}, s{sT1}
        s_lshr_b32 s{sCB}, s{sT0}, 2
        s_lshr_b32 s{sT1}, s{sT0}, 3
        s_add_u32 s{sROT}, s{sT1}, s{sM}
        s_and_b32 s{sROT}, s{sROT}, {c.rot_mask}
        s_lshl_b32 s{sROT}, s{sROT}, {c.rot_up}
        s_lshr_b32 s{sWR}, s{sWV}, 1
        s_and_b32 s{sWC}, s{sWV}, 1
        s_lshl_b32 s{sM0}, s{sWV}, 12
        s_lshl_b32 s{sXB}, s{sM}, 17
        s_lshl_b32 s{sT1}, s{sWV}, 15
        s_add_u32 s{sXB}, s{sXB}, s{sT1}
        s_mul_i32 s{sXR}, s{sN}, {XR_N}
        s_add_u32 s{sXR}, s{sXR}, {XR}
        s_mov_b32 s{sMSK}, 0xffff0000
        s_mov_b32 s{sMSK+1}, 0xffff0000
        v_lshrrev_b32 v{self.vHH}, 5, v0
        v_and_b32 v{self.vR}, 31, v0
        v_lshlrev_b32 v{self.vL16}, 4, v0
        v_and_b32 v{self.vT0}, 7, v0
        v_lshrrev_b32 v{self.vT1}, 4, v0
        v_xor_b32 v{self.vSW0}, v{self.vT0}, v{self.vT1}
        v_lshlrev_b32 v{self.vSW0}, 4, v{self.vSW0}
        v_and_b32 v{self.vT1}, 1, v{self.vT1}
        v_lshlrev_b32 v{self.vT1}, 2, v{self.vT1}
        v_xor_b32 v{self.vSW1}, v{self.vT0}, v{self.vT1}
        v_lshlrev_b32 v{self.vSW1}, 4, v{self.vSW1}
        """)
        p(f"""
        s_lshl_b32 s{sT0}, s{sM}, 1
        s_add_u32 s{sT0}, s{sT0}, s{sWR}
        s_mul_i32 s{sACT}, s{sT0}, 196608
        s_lshr_b32 s{sT1}, s{sN}, 2
        s_mul_i32 s{sT1}, s{sT1}, 49152
        s_add_u32 s{sACT}, s{sACT}, s{sT1}
        s_cmp_eq_u32 s{sTY}, 1
        s_cbranch_scc1 L_roleA
        """)

    def common_srds(self):
        p = self.p
        self.srd(SWS, kp(15), WS_USED)
        self.srd(SOUT, kp(13), 2048 * 512 * 4)
        self.srd(SWO, kp(2), 512 * 512 * 2)
        self.srd(SDBG, kp(14), 32)
        p(f"""s_cmp_eq_u32 s{sWC}, 0
        s_cselect_b32 s{SC}, s{kp(8)}, s{kp(9)}
        s_cselect_b32 s{SC+1}, s{kp(8)+1}, s{kp(9)+1}
        s_mov_b32 s{SC+2}, 0x80000
        s_mov_b32 s{SC+3}, 0x20000""")

    def gw_dma(self):
        p = self.p
        self.srd(SAG, kp(12), 1024)
        p(f"""
        s_lshl_b32 s{sT2}, s{sWV}, 1
        s_add_u32 s{sT2}, s{sT2}, s{sROT}
        v_add_u32 v{self.vT0}, s{sT2}, v{self.vHH}
        v_and_b32 v{self.vT0}, 7, v{self.vT0}
        v_lshlrev_b32 v{self.vT0}, 7, v{self.vT0}
        v_lshl_add_u32 v{self.vT0}, v{self.vR}, 2, v{self.vT0}
        s_lshl_b32 s{sT2}, s{sWV}, 8
        s_add_u32 m0, s{sT2}, {L_GW}
        """)
        p(f"buffer_load_dword v{self.vT0}, s[{SAG}:{SAG+3}], 0 offen lds", tag="st0")

    def mainloop(self, role, post):
        p = self.p
        def reads(s):
            i, ks = s >> 2, s & 3
            hi = 4 if (i & 2) else 0
            so = (i & 1) * 32768
            fr = self.vFr + 12 * (s & 1)
            p(f"ds_read_b128 a[{8*s}:{8*s+3}], v{self.vXa+hi+ks} offset:{so}")
            if role == "S":
                p(f"ds_read_b128 {v(fr,4)}, v{self.vWa+hi+ks} offset:{so}")
                p(f"ds_read_b128 {v(fr+4,4)}, v{self.vWa+hi+ks} offset:{so+4096}")
            else:
                for mat in range(2):
                    for u in range(2):
                        p(f"ds_read_b64_tr_b16 {v(fr+4*mat+2*u,2)}, v{self.vWa+(1 if hi else 0)} offset:{so + mat*8192 + ks*2048 + u*512}")
            p(f"ds_read_b128 {v(fr+8,4)}, v{self.vGa} offset:{L_GW + 32*s}")
            p(f"ds_read_b128 a[{8*s+4}:{8*s+7}], v{self.vXa+hi+ks} offset:{so+4096}")
        def mfmas(s, dq):
            fr = self.vFr + 12 * (s & 1)
            for rt in range(2):
                for cc in range(2):
                    acc = v(self.vAcc + 32 * cc + 16 * rt, 16)
                    cin = acc if (s > 0 or (role == "A" and cc == 0)) else "0"
                    p(f"v_mfma_f32_32x32x16_bf16 {acc}, a[{8*s+4*rt}:{8*s+4*rt+3}], {v(fr+4*cc,4)}, {cin}")
                    ga = v(self.vGt + 8 * rt + 4 * cc, 4)
                    p(f"v_mfma_f32_4x4x4_16b_bf16 {ga}, {v(fr+8+2*cc,2)}, a[{8*s+4*rt+2*cc}:{8*s+4*rt+2*cc+1}], {ga if s else '0'}")
                    if cc == 0 and dq: dq.pop(0)()
                    self.filler(3)
        p.wait_vm("st0"); p.barrier()
        self.stamp(1)
        reads(0)
        dq = self.stage_dma(2, role)
        for s in range(32):
            if s % 4 == 3 and s < 31:
                i = (s + 1) // 4
                assert not dq
                p.wait_vm(f"st{i}")
                p.barrier(lg=False)
                if i + 2 < 8: dq = self.stage_dma(i + 2, role)
                else: dq = list(post[i + 2 - 8])
                if i == 2 and role == "S": self.leader_signal()
                if i == 6:
                    p(f"v_lshlrev_b32 v{self.vT3}, 2, v{self.vL}")
                    p(f"buffer_load_dword v{self.vDbg}, v{self.vT3}, s[{SDBG}:{SDBG+3}], 0 offen sc1", tag="dbg")
            if s < 31: reads(s + 1)
            if s < 3 and dq: dq.pop(0)()
            mfmas(s, dq)
        while dq: dq.pop(0)()
        self.flush_fill()
        self.stamp(2)

    def leader_clear(self):
        p = self.p
        p(f"""s_cmp_eq_u32 s{sM}, 15
        s_cbranch_scc0 L_nolead""")
        t = 144
        p(f"""v_mov_b32 v{t}, -1
        v_mov_b32 v{t+1}, -1
        v_mov_b32 v{t+2}, -1
        v_mov_b32 v{t+3}, -1
        s_lshl_b32 s{sT2}, s{sWV}, 10
        s_add_u32 s{sT2}, s{sT2}, s{sXR}""")
        for i in range(11):
            p(f"buffer_store_dwordx4 {v(t,4)}, v{self.vL16}, s[{SWS}:{SWS+3}], s{sT2} offen sc1", count=False)
            p(f"s_add_u32 s{sT2}, s{sT2}, 4096")
        p(f"""s_lshl_b32 s{sT2}, s{sN}, 14
        s_add_u32 s{sT2}, s{sT2}, s{sM0}
        s_add_u32 s{sT2}, s{sT2}, {FLAG}
        v_lshlrev_b32 v{self.vT0}, 6, v{self.vL}""")
        p(f"buffer_store_dword v{t}, v{self.vT0}, s[{SWS}:{SWS+3}], s{sT2} offen sc1", count=False)
        p("s_nop 1\nL_nolead:")

    def leader_signal(self):
        p = self.p
        p(f"""s_lshl_b32 s{sT2}, s{sWV}, 4
        s_add_u32 s{sT2}, s{sT2}, s{sM}
        s_cmp_eq_u32 s{sT2}, 15
        s_cbranch_scc0 L_nosig
        s_lshl_b32 s{sT2}, s{sN}, 2
        v_mov_b32 v{self.vT2}, 1
        v_lshlrev_b32 v{self.vT3}, 8, v{self.vL}""")
        p(f"buffer_store_dword v{self.vT2}, v{self.vT3}, s[{SDBG}:{SDBG+3}], s{sT2} offen sc1", count=False)
        p("L_nosig:")

    def leader_check(self, role):
        p = self.p
        p.wait_vm("dbg")
        p(f"""s_mov_b32 s{sCNT}, 0
        L_lchk{role}:
        v_cmp_ne_u32 vcc, 0, v{self.vDbg}
        s_cmp_eq_u32 vcc_lo, 0xff
        s_cbranch_scc0 L_lslow{role}
        L_lok{role}:""")
        self.slow.append(f"""L_lslow{role}:
        s_add_u32 s{sCNT}, s{sCNT}, 1
        s_cmp_gt_u32 s{sCNT}, {SPIN}
        s_cbranch_scc1 L_lok{role}
        v_lshlrev_b32 v{self.vT3}, 2, v{self.vL}
        buffer_load_dword v{self.vDbg}, v{self.vT3}, s[{SDBG}:{SDBG+3}], 0 offen sc1
        s_waitcnt vmcnt(0)
        s_branch L_lchk{role}""")

    def set_flag(self, ty):
        p = self.p
        p(f"""s_lshl_b32 s{sT0}, s{sM}, 1
        s_add_u32 s{sT0}, s{sT0}, s{sWR}
        s_lshl_b32 s{sT0}, s{sT0}, 12
        s_lshr_b32 s{sT1}, s{sN}, 2
        s_lshl_b32 s{sT1}, s{sT1}, 11
        s_add_u32 s{sT0}, s{sT0}, s{sT1}
        s_and_b32 s{sT1}, s{sN}, 3
        s_lshl_b32 s{sT1}, s{sT1}, 1
        s_add_u32 s{sT1}, s{sT1}, s{sWC}
        s_lshl_b32 s{sT1}, s{sT1}, 7
        s_add_u32 s{sT0}, s{sT0}, s{sT1}
        s_add_u32 s{sT0}, s{sT0}, {FLAG + ty*1024}
        v_mov_b32 v{self.vT2}, 0
        v_lshlrev_b32 v{self.vT3}, 24, v{self.vL}""")
        p.wait_vm("act")
        p(f"buffer_store_dword v{self.vT2}, v{self.vT3}, s[{SWS}:{SWS+3}], s{sT0} offen sc1", tag="flag")

    def wo_reads(self, base):
        p = self.p
        A0, A1 = self.vXa, self.vXa + 1
        self.run(self.tr_lane(A0, 4))
        p(f"""s_lshl_b32 s{sT0}, s{sWC}, 15
        s_add_u32 s{sT0}, s{sT0}, {base}
        v_add_u32 v{A0}, s{sT0}, v{A0}
        v_xor_b32 v{A1}, 64, v{A0}""")
        it = []
        for i in range(16):
            for ct in range(2):
                for u in range(2):
                    it.append(f"ds_read_b64_tr_b16 a[{8*i+4*ct+2*u}:{8*i+4*ct+2*u+1}], v{A0+ct} offset:{i*2048 + u*1024}")
        return it

    def phi(self, acc, n, vC, tmp):
        o = []
        for j in range(0, n, 4):
            for h in (0, 2):
                o.append(f"v_pk_fma_f32 {v(tmp+h,2)}, {v(acc+j+h,2)}, {v(vC,2)}, {v(vC,2)} op_sel:[0,0,1] op_sel_hi:[1,0,1]")
            for q in range(4):
                o.append(f"v_exp_f32 v{tmp+q}, v{tmp+q} clamp")
                o.append(f"v_max_f32 v{acc+j+q}, {EPS:#x}, v{acc+j+q}")
            for h in (0, 2):
                o.append(f"v_pk_add_f32 {v(acc+j+h,2)}, {v(acc+j+h,2)}, {v(tmp+h,2)}")
        return o

    def gate_fin(self, sign):
        G = self.vGt
        return [f"v_add_f32 v{G}, v{G}, v{G+4}", f"v_add_f32 v{G+8}, v{G+8}, v{G+12}", f"v_permlane32_swap_b32 v{G}, v{G+8}",
                f"v_add_f32 v{G}, v{G}, v{G+8}", f"v_mul_f32 v{G}, {(LOG2E | (0x80000000 if sign < 0 else 0)):#x}, v{G}",
                f"v_exp_f32 v{G}, v{G}", f"v_add_f32 v{G}, 1.0, v{G}", f"v_rcp_f32 v{G}, v{G}"]

    def pack(self, dst, src, n):
        return [f"v_cvt_pk_bf16_f32 v{dst+i}, v{src+2*i}, v{src+2*i+1}" for i in range(n)]

    def roleS(self):
        p, c = self.p, self.c
        T0, T1, T2, T3 = self.vT0, self.vT1, self.vT2, self.vT3
        p(f"""
        v_bfe_u32 v{T0}, v{self.vL}, 3, 2
        v_lshl_add_u32 v{T1}, v{self.vHH}, 4, v{T0}
        v_lshl_add_u32 v{self.vXo}, v{T1}, 10, v{self.vSW0}
        v_xor_b32 v{self.vXo+1}, 64, v{self.vXo}
        v_add_u32 v{self.vXo+1}, 3072, v{self.vXo+1}
        v_add_u32 v{self.vXo+2}, 6144, v{self.vXo}
        v_add_u32 v{self.vXo+3}, 6144, v{self.vXo+1}
        v_lshl_add_u32 v{T1}, v{self.vHH}, 3, v{T0}
        v_lshl_add_u32 v{self.vWo}, v{T1}, 10, v{self.vSW0}
        v_xor_b32 v{self.vWo+1}, 64, v{self.vWo}
        v_add_u32 v{self.vWo+1}, 3072, v{self.vWo+1}
        v_add_u32 v{self.vWo+2}, {14*1024}, v{self.vWo}
        v_add_u32 v{self.vWo+3}, {14*1024}, v{self.vWo+1}
        s_lshl_b32 s{sWB}, s{sN}, 16
        s_lshl_b32 s{sT1}, s{sWR}, 15
        s_add_u32 s{sWB}, s{sWB}, s{sT1}
        """)
        p(f"""
        v_and_b32 v{T0}, 0x13, v{self.vR}
        v_bfe_u32 v{T1}, v{self.vR}, 2, 1
        v_lshl_or_b32 v{T0}, v{T1}, 3, v{T0}
        v_bfe_u32 v{T1}, v{self.vR}, 3, 1
        v_lshl_or_b32 v{T0}, v{T1}, 2, v{T0}
        s_lshl_b32 s{sT0}, s{sN}, 6
        s_lshl_b32 s{sT1}, s{sWC}, 5
        s_add_u32 s{sT0}, s{sT0}, s{sT1}
        v_add_lshl_u32 v{T2}, v{T0}, s{sT0}, 1
        """)
        self.srd(SX, kp(0), 2048 * 1024)
        p(f"""s_cmp_eq_u32 s{sWC}, 0
        s_cselect_b32 s{SW}, s{kp(6)}, s{kp(7)}
        s_cselect_b32 s{SW+1}, s{kp(6)+1}, s{kp(7)+1}
        s_mov_b32 s{SW+2}, 0x80000
        s_mov_b32 s{SW+3}, 0x20000""")
        PR, PI = 144, 160
        WW = 176
        LR, LI, LD = 192, 193, 194
        LB = (PR + 1, PI + 1)
        NLI = 195
        C2 = (196, 197); KK = (198, 199); L16 = (200, 201); L32 = (202, 203); L64 = (204, 205); L128 = (206, 207); L256 = (208, 209)
        GA0 = (210, 211); GA1 = (212, 213); AL0 = (214, 215); AL1 = (216, 217); TM = (218, 219)
        vGo = 220
        self.run(self.stage_dma(0, "S")[:4])
        p(f"global_load_ushort v{LR}, v{T2}, s[{kp(4)}:{kp(4)+1}]", tag="lam")
        p(f"global_load_ushort v{LI}, v{T2}, s[{kp(5)}:{kp(5)+1}]", tag="lam")
        p(f"global_load_ushort v{LD}, v{T2}, s[{kp(10)}:{kp(10)+1}]", tag="lam")
        self.run(self.stage_dma(0, "S")[4:])
        self.gw_dma()
        self.run(self.stage_dma(1, "S"))
        self.common_srds()
        self.leader_clear()
        p(f"s_lshl_b32 s{sT0}, s{sWR}, 13")
        self.run(self.frag_addrs(self.vXa, sT0, 0))
        p(f"s_lshl_b32 s{sT0}, s{sWC}, 13")
        self.run(self.frag_addrs(self.vWa, sT0, 16384))
        p(f"v_lshlrev_b32 v{self.vGa}, 4, v{self.vHH}")
        f = [f"v_lshlrev_b32 v{LR}, 16, v{LR}", f"v_lshlrev_b32 v{LI}, 16, v{LI}", f"v_lshlrev_b32 v{LD}, 16, v{LD}",
             f"v_mul_f32 v{LD}, {LOG2E:#x}, v{LD}", f"v_exp_f32 v{LD}, v{LD}", f"v_mov_b32 v{PR}, 1.0",
             f"v_cvt_pk_bf16_f32 v{LD}, v{LD}, v{LD}", f"v_lshlrev_b32 v{LD}, 16, v{LD}",
             f"v_mul_f32 v{TM[0]}, v{LD}, v{LR}", f"v_mul_f32 v{TM[1]}, v{LD}, v{LI}",
             f"v_mul_f32 v{TM[0]}, {LOG2E:#x}, v{TM[0]}", f"v_mul_f32 v{TM[1]}, 0.15915494, v{TM[1]}",
             f"v_exp_f32 v{TM[0]}, v{TM[0]}", f"v_rndne_f32 v{LD}, v{TM[1]}", f"v_sub_f32 v{TM[1]}, v{TM[1]}, v{LD}",
             f"v_cos_f32 v{LB[0]}, v{TM[1]}", f"v_sin_f32 v{LB[1]}, v{TM[1]}", f"v_mov_b32 v{PI}, 0",
             f"v_mul_f32 v{LB[0]}, v{LB[0]}, v{TM[0]}", f"v_mul_f32 v{LB[1]}, v{LB[1]}, v{TM[0]}",
             f"v_mul_f32 v{LD}, v{LR}, v{LR}", f"v_fmac_f32 v{LD}, v{LI}, v{LI}", f"v_rcp_f32 v{LD}, v{LD}",
             f"v_add_f32 v{TM[0]}, -1.0, v{LB[0]}", f"v_sub_f32 v{NLI}, 0, v{LB[1]}", f"v_add_f32 v{LD}, v{LD}, v{LD}",
             f"v_mul_f32 v{C2[0]}, v{TM[0]}, v{LR}", f"v_mul_f32 v{C2[1]}, v{LB[1]}, v{LR}",
             f"v_fmac_f32 v{C2[0]}, v{LB[1]}, v{LI}", f"v_fma_f32 v{C2[1]}, -v{TM[0]}, v{LI}, v{C2[1]}",
             f"v_mul_f32 v{C2[0]}, v{C2[0]}, v{LD}", f"v_mul_f32 v{C2[1]}, v{C2[1]}, v{LD}"]
        for i in range(2, 16): f += self.cmul((PR + i, PI + i), (PR + i - 1, PI + i - 1), LB)
        f += self.cmul(L16, (PR + 15, PI + 15), LB) + self.cmul(L32, L16, L16) + self.cmul(L64, L32, L32)
        f += self.cmul(L128, L64, L64) + self.cmul(L256, L128, L128) + self.cmul(KK, C2, LB)
        f += [f"s_mov_b32 s{sMS2}, 0", f"s_mov_b32 s{sMS2+1}, -1",
              f"v_cndmask_b32 v{WW}, 1.0, v{L128[0]}, s[{sMS2}:{sMS2+1}]", f"v_cndmask_b32 v{WW+1}, 0, v{L128[1]}, s[{sMS2}:{sMS2+1}]",
              f"v_cndmask_b32 v{GA0[0]}, 1.0, v{L16[0]}, s[{sMS2}:{sMS2+1}]", f"v_cndmask_b32 v{GA0[1]}, 0, v{L16[1]}, s[{sMS2}:{sMS2+1}]"]
        for i in range(1, 8): f += self.cmul((WW + 2 * i, WW + 2 * i + 1), (WW + 2 * i - 2, WW + 2 * i - 1), L256)
        f += self.cmul(GA1, GA0, L32)
        f += [f"s_sub_u32 s94, 0, s{sWR}", f"s_mov_b32 s95, s94",
              f"v_cndmask_b32 v{AL1[0]}, 1.0, v{L64[0]}, s[94:95]", f"v_cndmask_b32 v{AL1[1]}, 0, v{L64[1]}, s[94:95]"]
        f += self.cmul(TM, KK, AL1) + self.cmul(AL0, TM, GA0) + self.cmul(AL1, TM, GA1)
        f += [f"s_lshl_b32 s{sT0}, s{sM}, 9\ns_lshl_b32 s{sT1}, s{sWC}, 8\ns_add_u32 s{sT0}, s{sT0}, s{sT1}\nv_lshl_add_u32 v{self.vPub}, v{self.vR}, 3, s{sT0}",
              f"v_lshlrev_b32 v{LD}, 9, v{self.vHH}", f"v_sub_u32 v{vGo}, v{self.vPub}, v{LD}", f"v_subrev_u32 v{vGo}, 512, v{vGo}"]
        for i in range(1, 8): f.append(f"v_subrev_u32 v{vGo+i}, {1024*i}, v{vGo}")
        f += [f"v_lshl_or_b32 v{self.vPub}, v{self.vHH}, 31, v{self.vPub}",
              f"v_cndmask_b32 v{self.vPub}, -1, v{self.vPub}, s[94:95]"]
        vOo = 228
        f += self.ident_voffs(vOo, self.vSW1, False)
        f += [f"s_add_u32 s{SAG}, s{kp(15)}, s{sXR}\ns_addc_u32 s{SAG+1}, s{kp(15)+1}, 0\ns_add_u32 s{SAG}, s{SAG}, {XR_AGG}\ns_addc_u32 s{SAG+1}, s{SAG+1}, 0\ns_mov_b32 s{SAG+2}, 8192"]
        self.fill = f
        self.mainloop("S", [self.wo_dma(0, SLOT0, vOo, "wo"), self.wo_dma(1, SLOT0, vOo, "wo")])

        UR = lambda rt: self.vAcc + 16 * rt
        UI = lambda rt: self.vAcc + 32 + 16 * rt
        E2 = 40
        sw = "op_sel:[0,1,0] op_sel_hi:[1,0,1]"; swm = "op_sel:[0,1] op_sel_hi:[1,0]"
        ng = " neg_lo:[1,0,0] neg_hi:[1,0,0]"
        G0 = self.vGt
        for rt in range(2):
            er, ei = E2 + 4 * rt, E2 + 4 * rt + 2
            for j in range(0, 16, 2):
                pr, pi = v(PR + 14 - j, 2), v(PI + 14 - j, 2)
                ur, ui = v(UR(rt) + j, 2), v(UI(rt) + j, 2)
                if j == 0:
                    p(f"v_pk_mul_f32 {v(er,2)}, {ur}, {pr} {swm}\nv_pk_mul_f32 {v(ei,2)}, {ur}, {pi} {swm}")
                else:
                    p(f"v_pk_fma_f32 {v(er,2)}, {ur}, {pr}, {v(er,2)} {sw}\nv_pk_fma_f32 {v(ei,2)}, {ur}, {pi}, {v(ei,2)} {sw}")
                p(f"v_pk_fma_f32 {v(er,2)}, {ui}, {pi}, {v(er,2)} {sw}{ng}\nv_pk_fma_f32 {v(ei,2)}, {ui}, {pr}, {v(ei,2)} {sw}")
        for q in range(0, 8, 2):
            p(f"v_add_f32 v{E2+q}, v{E2+q}, v{E2+q+1}")
        for q in range(0, 8, 2):
            p(f"v_mov_b32 v{E2+q+1}, v{E2+q}")
        for q in range(0, 8, 2):
            p(f"v_permlane32_swap_b32 v{E2+q}, v{E2+q+1}")
        E00, E01, E10, E11 = (E2, E2 + 2), (E2 + 1, E2 + 3), (E2 + 4, E2 + 6), (E2 + 5, E2 + 7)
        EW = (48, 49)
        self.run(self.cfma(E01, L16, E00, E01) + self.cfma(E10, L16, E01, E10) + self.cfma(EW, L16, E10, E11))
        p(f"""s_lshl_b32 s{sT0}, s{sWV}, 9
        v_lshl_add_u32 v{T0}, v{self.vL}, 3, s{sT0}
        ds_write_b64 v{T0}, {v(EW[0],2)} offset:{L_EX}
        s_lshl_b32 s{sT0}, s{sWC}, 9
        v_lshl_add_u32 v{T0}, v{self.vL}, 3, s{sT0}""")
        p.barrier()
        E0 = (50, 51); TOT = (52, 53)
        p(f"ds_read_b64 {v(E0[0],2)}, v{T0} offset:{L_EX}")
        self.leader_check("S")
        self.run(self.cfma(TOT, L64, E0, EW))
        p(f"v_min_u32 v{TOT[0]}, -2, v{TOT[0]}\nv_min_u32 v{TOT[1]}, -2, v{TOT[1]}")
        p(f"buffer_store_dwordx2 {v(TOT[0],2)}, v{self.vPub}, s[{SAG}:{SAG+3}], 0 offen sc1", tag="pub")
        self.stamp(3)
        self.run(self.ident_voffs(vOo, self.vSW0, True))
        dq = self.c_dma(1, vOo, "c1")
        w = []
        w += self.gate_fin(1) + [f"v_mov_b32 v{G0+4}, 0xffff"]
        w += [f"v_and_b32 v{T0}, 3, v{self.vR}", f"v_bfe_u32 v{T1}, v{self.vR}, 2, 2", f"v_lshl_or_b32 v{T0}, v{T1}, 3, v{T0}",
              f"v_lshrrev_b32 v{T1}, 4, v{self.vR}", f"v_lshl_or_b32 v{T0}, v{T1}, 2, v{T0}", f"v_lshlrev_b32 v{T0}, 2, v{T0}",
              f"ds_bpermute_b32 v{G0+2}, v{T0}, v{G0}", f"v_add_u32 v{T1}, 128, v{T0}", f"ds_bpermute_b32 v{G0+3}, v{T1}, v{G0}"]
        for j in range(1, 16):
            for rt in range(2):
                w += [f"v_fmac_f32 v{UR(rt)+j}, v{LB[0]}, v{UR(rt)+j-1}", f"v_fmac_f32 v{UI(rt)+j}, v{LB[0]}, v{UI(rt)+j-1}",
                      f"v_fmac_f32 v{UR(rt)+j}, v{NLI}, v{UI(rt)+j-1}", f"v_fmac_f32 v{UI(rt)+j}, v{LB[1]}, v{UR(rt)+j-1}"]
        c2 = v(C2[0], 2); TP = 54
        for rt in range(2):
            for j in range(0, 16, 2):
                ur, ui = v(UR(rt) + j, 2), v(UI(rt) + j, 2)
                w += [f"v_pk_mul_f32 {v(TP,2)}, {ur}, {c2} op_sel:[0,1] op_sel_hi:[1,1]",
                      f"v_pk_mul_f32 {ur}, {ur}, {c2} op_sel:[0,0] op_sel_hi:[1,0]",
                      f"v_pk_fma_f32 {ur}, {ui}, {c2}, {ur} op_sel:[0,1,0] op_sel_hi:[1,1,1] neg_lo:[1,0,0] neg_hi:[1,0,0]",
                      f"v_pk_fma_f32 {ui}, {ui}, {c2}, {v(TP,2)} op_sel:[0,0,0] op_sel_hi:[1,0,1] neg_lo:[1,0,1] neg_hi:[1,0,1]"]
        hm = f"s[{sMS2}:{sMS2+1}]"
        PS0, PS1, BE0, BE1 = (56, 57), (58, 59), (60, 61), (62, 63)
        w += [f"v_cndmask_b32 v{E0[0]}, 0, v{E0[0]}, s[94:95]", f"v_cndmask_b32 v{E0[1]}, 0, v{E0[1]}, s[94:95]",
              f"v_cndmask_b32 v{PS0[0]}, 0, v{E00[0]}, {hm}", f"v_cndmask_b32 v{PS0[1]}, 0, v{E00[1]}, {hm}",
              f"v_cndmask_b32 v{PS1[0]}, v{E01[0]}, v{E10[0]}, {hm}", f"v_cndmask_b32 v{PS1[1]}, v{E01[1]}, v{E10[1]}, {hm}"]
        w += self.cfma(PS0, GA0, E0, PS0) + self.cfma(PS1, GA1, E0, PS1) + self.cmul(BE0, KK, PS0) + self.cmul(BE1, KK, PS1)
        DG = 10
        def gpub():
            p(f"""s_and_b32 s{sT0}, s{sN}, 3
            s_add_u32 s{sT0}, s{sT0}, s{sWC}
            s_cmp_eq_u32 s{sT0}, 0
            s_cselect_b32 s{sT1}, 0, 0x80000000
            v_cndmask_b32 v{T2}, v{G0+2}, v{G0+3}, {hm}
            v_lshl_or_b32 v{T3}, v{self.vL}, 2, s{sT1}
            s_lshr_b32 s{sT0}, s{sN}, 2
            s_lshl_b32 s{sT0}, s{sT0}, 13
            s_lshl_b32 s{sT1}, s{sM}, 9
            s_add_u32 s{sT0}, s{sT0}, s{sT1}
            s_lshl_b32 s{sT1}, s{sWR}, 8
            s_add_u32 s{sT0}, s{sT0}, s{sT1}
            s_add_u32 s{sT0}, s{sT0}, {GOFF}""")
            p(f"buffer_store_dword v{T2}, v{T3}, s[{SWS}:{SWS+3}], s{sT0} offen sc1", tag="act")
        w.append(gpub)
        w += [f"v_cvt_pk_bf16_f32 v{G0+2}, v{G0+2}, v{G0+2}", f"v_cvt_pk_bf16_f32 v{G0+3}, v{G0+3}, v{G0+3}",
              f"v_and_b32 v{T0}, 1, v{self.vR}", f"v_lshlrev_b32 v{T0}, 4, v{T0}", f"v_lshlrev_b32 v{T0}, v{T0}, v{G0+4}",
              f"v_and_b32 v{G0+2}, v{G0+2}, v{T0}", f"v_and_b32 v{G0+3}, v{G0+3}, v{T0}",
              f"v_lshrrev_b32 v{T0}, 1, v{self.vR}", f"v_lshlrev_b32 v{T1}, 3, v{self.vHH}", f"v_sub_u32 v{T0}, v{T0}, v{T1}"]
        for q in range(8):
            w += [f"v_cmp_eq_u32 vcc, {q}, v{T0}", f"v_cndmask_b32 v{DG+q}, 0, v{G0+2}, vcc", f"v_cndmask_b32 v{DG+8+q}, 0, v{G0+3}, vcc"]
        k = 0
        for x in w:
            if k % 14 == 0 and dq: dq.pop(0)()
            self.run([x]); k += 1
        while dq: dq.pop(0)()
        self.stamp(4)
        GB = 232
        p.wait_vm("wo"); p.barrier()
        gl = [f"buffer_load_dwordx2 {v(GB+2*i,2)}, v{vGo+i}, s[{SAG}:{SAG+3}], 0 offen sc1" for i in range(8)]
        for x in gl: p(x, tag="gat")
        self.vXa = 26
        self.run(self.wo_reads(SLOT0))
        self.vXa = 18
        p.wait_vm("gat")
        p(f"s_mov_b32 s{sCNT}, 0\nL_gchkS:")
        p(f"v_max_u32 v{T0}, v{GB}, v{GB+1}")
        for i in range(2, 16, 2): p(f"v_max3_u32 v{T0}, v{T0}, v{GB+i}, v{GB+i+1}")
        p(f"v_cmp_eq_u32 vcc, -1, v{T0}\ns_cbranch_vccnz L_gslowS\nL_gokS:")
        self.slow.append(f"L_gslowS:\ns_add_u32 s{sCNT}, s{sCNT}, 1\ns_cmp_gt_u32 s{sCNT}, {SPIN}\ns_cbranch_scc1 L_gokS\n" + "\n".join(gl) + "\ns_waitcnt vmcnt(0)\ns_branch L_gchkS")
        self.stamp(5)
        CA = 40
        for i in range(8):
            g2, w2 = v(GB + 2 * i, 2), v(WW + 2 * i, 2)
            if i == 0: p(f"v_pk_mul_f32 {v(CA,2)}, {g2}, {w2} op_sel:[0,0] op_sel_hi:[1,0]")
            else: p(f"v_pk_fma_f32 {v(CA,2)}, {g2}, {w2}, {v(CA,2)} op_sel:[0,0,0] op_sel_hi:[1,0,1]")
            p(f"v_pk_fma_f32 {v(CA,2)}, {g2}, {w2}, {v(CA,2)} op_sel:[1,1,0] op_sel_hi:[0,1,1] neg_lo:[1,0,0]")
        p(f"v_mov_b32 v{CA+2}, v{CA}\nv_mov_b32 v{CA+3}, v{CA+1}")
        p(f"v_permlane32_swap_b32 v{CA}, v{CA+2}\nv_permlane32_swap_b32 v{CA+1}, v{CA+3}")
        p(f"v_pk_add_f32 {v(CA,2)}, {v(CA,2)}, {v(CA+2,2)}")
        self.run(self.cfma(BE0, AL0, (CA, CA + 1), BE0) + self.cfma(BE1, AL1, (CA, CA + 1), BE1))
        p(f"""s_and_b32 s{sT0}, s{sN}, 3
        s_lshl_b32 s{sT0}, s{sT0}, 13
        s_lshl_b32 s{sT1}, s{sWC}, 12
        s_add_u32 s{sT0}, s{sT0}, s{sT1}
        s_add_u32 s{sACT}, s{sACT}, s{sT0}
        s_add_u32 s{sT1}, s{sACT}, 98304""")
        HP = 176
        TT = [128, 208, 224, 40]
        def finish(ti):
            rt, cc = ti >> 1, ti & 1
            o = HP + 8 * ti
            self.run(self.pack(o, TT[ti], 8))
            for sidx in range(2):
                p(f"buffer_store_dwordx4 {v(o+4*sidx,4)}, v{self.vL16}, s[{SWS}:{SWS+3}], s{sT1 if rt else sACT} offen offset:{(2*cc+sidx)*1024} sc1", tag="act")
        for rt in range(2):
            be = v((BE0, BE1)[rt][0], 2)
            for cc in range(2):
                ti = 2 * rt + cc
                U = UR(rt) if cc == 0 else UI(rt)
                for j in range(0, 16, 2):
                    u2, pr, pi = v(U + j, 2), v(PR + j, 2), v(PI + j, 2)
                    if cc == 0:
                        p(f"v_pk_fma_f32 {u2}, {pr}, {be}, {u2} op_sel:[0,0,0] op_sel_hi:[1,0,1]")
                        p(f"v_pk_fma_f32 {u2}, {pi}, {be}, {u2} op_sel:[0,1,0] op_sel_hi:[1,1,1]{ng}")
                    else:
                        p(f"v_pk_fma_f32 {u2}, {pr}, {be}, {u2} op_sel:[0,1,0] op_sel_hi:[1,1,1]{ng}")
                        p(f"v_pk_fma_f32 {u2}, {pi}, {be}, {u2} op_sel:[0,0,0] op_sel_hi:[1,0,1]{ng}")
                self.run(self.pack(HP + 8 * ti, U, 8))
                if ti > 0: finish(ti - 1)
                p(f"v_mfma_f32_32x32x16_bf16 {v(TT[ti],16)}, {v(HP+8*ti,4)}, {v(DG+8*rt,4)}, 0")
                p(f"v_mfma_f32_32x32x16_bf16 {v(TT[ti],16)}, {v(HP+8*ti+4,4)}, {v(DG+8*rt+4,4)}, {v(TT[ti],16)}")
        finish(3)
        self.stamp(6)
        p.barrier()
        self.run(self.ident_voffs(self.vXo, self.vSW0, True))
        self.run(self.c_dma(0, self.vXo, "c0"))
        self.set_flag(0)
        self.stamp(7)

    def roleA(self):
        p, c = self.p, self.c
        T0, T1, T2, T3 = self.vT0, self.vT1, self.vT2, self.vT3
        self.run(self.ident_voffs(self.vXo, self.vSW0, True))
        p(f"""
        v_mul_u32_u24 v{T0}, 3072, v{T0}
        v_add_u32 v{self.vWo}, v{T0}, v{self.vSW1}
        v_add_u32 v{self.vWo+1}, {8*3072-1024}, v{self.vWo}
        v_add_u32 v{self.vWo+2}, {2*(8*3072-1024)}, v{self.vWo}
        v_add_u32 v{self.vWo+3}, {3*(8*3072-1024)}, v{self.vWo}
        s_mul_i32 s{sWB}, s{sWC}, {32*3072}
        s_lshl_b32 s{sT1}, s{sWR}, 10
        s_add_u32 s{sWB}, s{sWB}, s{sT1}
        s_lshl_b32 s{sT1}, s{sN}, 7
        s_add_u32 s{sWB}, s{sWB}, s{sT1}
        s_add_u32 s{sWB}, s{sWB}, 1024
        """)
        self.srd(SX, kp(0), 2048 * 1024)
        self.srd(SW, kp(1), 512 * 3072)
        self.run(self.stage_dma(0, "A"))
        self.gw_dma()
        self.run(self.stage_dma(1, "A"))
        self.common_srds()
        p(f"s_lshl_b32 s{sT0}, s{sWR}, 13")
        self.run(self.frag_addrs(self.vXa, sT0, 0))
        vQa = self.vWa + 2
        self.run(self.tr_lane(vQa, 8))
        p(f"""s_lshl_b32 s{sT0}, s{sWC}, 6
        v_xor_b32 v{vQa}, s{sT0}, v{vQa}
        v_add_u32 v{vQa}, {SLOT0}, v{vQa}
        v_add_u32 v{self.vWa}, 16384, v{vQa}
        v_add_u32 v{self.vWa+1}, {16384+65536}, v{vQa}
        v_lshlrev_b32 v{self.vGa}, 4, v{self.vHH}""")
        for j in range(32): p(f"v_mov_b32 v{self.vAcc+j}, {EPS:#x}")
        QA = 144
        vC = 176
        ONE = 180
        SEL = 184
        vOo = 188
        vZo = 178; vKo = 179
        f = [f"v_mov_b32 v{QA+j}, {EPS:#x}" for j in range(32)]
        f += [f"v_mov_b32 v{vC}, {LOG2E:#x}", f"v_mov_b32 v{vC+1}, 0xb5c1a2a0"]
        f += [f"v_mov_b32 v{ONE+j}, 0x3f803f80" for j in range(4)]
        f += [f"v_bfe_u32 v{T0}, v{self.vR}, 2, 1", f"v_xor_b32 v{T0}, v{T0}, v{self.vHH}", f"v_lshlrev_b32 v{T0}, 3, v{T0}",
              f"v_lshrrev_b32 v{T1}, 3, v{self.vR}", f"v_lshl_or_b32 v{T0}, v{T1}, 1, v{T0}",
              f"v_bfe_u32 v{T1}, v{self.vR}, 1, 1", f"v_or_b32 v{T0}, v{T0}, v{T1}",
              f"v_and_b32 v{T1}, 1, v{self.vR}", f"v_lshlrev_b32 v{T1}, 4, v{T1}", f"v_mov_b32 v{T2}, 0x3f80", f"v_lshlrev_b32 v{T1}, v{T1}, v{T2}"]
        for q in range(4):
            f += [f"v_cmp_eq_u32 vcc, {q}, v{T0}\nv_cndmask_b32 v{SEL+q}, 0, v{T1}, vcc"]
        f += self.ident_voffs(vOo, self.vSW1, False)
        f += [f"s_sub_u32 s94, 0, s{sWR}\ns_mov_b32 s95, s94",
              f"s_lshl_b32 s{sT0}, s{sWC}, 14\nv_add_u32 v{vKo}, s{sT0}, v{self.vL16}",
              f"s_lshl_b32 s{sT0}, s{sM}, 10\nv_add_u32 v{self.vPub}, s{sT0}, v{vKo}",
              f"v_and_b32 v{T0}, 15, v{self.vL}", f"v_and_b32 v{T1}, 48, v{self.vL}",
              f"s_lshl_b32 s{sT0}, s{sWC}, 10\ns_add_u32 s{sT0}, s{sT0}, {XR_Z}\nv_add_u32 v{T1}, s{sT0}, v{T1}",
              f"v_xor_b32 v{vZo}, 16, v{T1}", f"v_lshl_add_u32 v{vZo}, v{T0}, 6, v{vZo}",
              f"s_lshl_b32 s{sT0}, s{sM}, 6\nv_add_u32 v{T1}, s{sT0}, v{T1}",
              f"v_lshl_or_b32 v{T1}, v{T0}, 24, v{T1}",
              f"v_cndmask_b32 v{self.vPub}, v{self.vPub}, v{T1}, s[94:95]"]
        self.fill = f
        self.mainloop("A", [self.wq_dma(0), self.wq_dma(1)])

        KA_ = lambda rt: self.vAcc + 16 * rt
        VA_ = lambda rt: self.vAcc + 32 + 16 * rt
        G0 = self.vGt
        GG = 38
        PK, PV = 40, 48
        DKV, DZ = 192, 208
        TMP = 56
        for rt in range(2):
            pk, pv = (40, 48) if rt == 0 else (224, 232)
            self.run(self.phi(KA_(rt), 16, vC, TMP))
            self.run(self.pack(pk, KA_(rt), 8) + self.pack(pv, VA_(rt), 8))
            for u in range(2):
                first = rt == 0 and u == 0
                p(f"v_mfma_f32_32x32x16_bf16 {v(DKV,16)}, {v(pk+4*u,4)}, {v(pv+4*u,4)}, {'0' if first else v(DKV,16)}")
                p(f"v_mfma_f32_32x32x16_bf16 {v(DZ,16)}, {v(pk+4*u,4)}, {v(ONE,4)}, {'0' if first else v(DZ,16)}")
        p(f"""s_lshl_b32 s{sT0}, s{sWV}, 11
        v_add_u32 v{T0}, s{sT0}, v{self.vL16}
        v_xor_b32 v{T1}, 4096, v{T0}""")
        msk = f"s[{sMSK}:{sMSK+1}]"
        for j in range(8): p(f"v_cndmask_b32 v{DKV+j}, v{DKV+j}, v{DKV+8+j}, {msk}")
        for j in range(8): p(f"v_cndmask_b32 v{DZ+j}, v{DZ+j}, v{DZ+8+j}, {msk}")
        SND, KEEP = DKV + 8, DZ + 8
        for j in range(8): p(f"v_cndmask_b32 v{SND+j}, v{DZ+j}, v{DKV+j}, s[94:95]")
        p(f"ds_write_b128 v{T0}, {v(SND,4)} offset:{L_EX}\nds_write_b128 v{T0}, {v(SND+4,4)} offset:{L_EX+1024}")
        for j in range(8): p(f"v_cndmask_b32 v{KEEP+j}, v{DKV+j}, v{DZ+j}, s[94:95]")
        p.wait_vm("st8")
        p.barrier()
        p(f"ds_read_b128 {v(DKV,4)}, v{T1} offset:{L_EX}\nds_read_b128 {v(DKV+4,4)}, v{T1} offset:{L_EX+1024}")
        def qreads(s):
            fr = self.vFr + 4 * (s & 3)
            for u in range(2):
                p(f"ds_read_b64_tr_b16 {v(fr+2*u,2)}, v{vQa} offset:{s*2048 + u*512}")
        qreads(0); qreads(1)
        self.leader_check("A")
        for j in range(0, 8, 2): p(f"v_pk_add_f32 {v(KEEP+j,2)}, {v(KEEP+j,2)}, {v(DKV+j,2)}")
        self.run(self.pack(DZ, KEEP, 4))
        for j in range(4): p(f"v_min_u32 v{DZ+j}, -2, v{DZ+j}")
        p(f"buffer_store_dwordx4 {v(DZ,4)}, v{self.vPub}, s[{SWS}:{SWS+3}], s{sXR} offen sc1", tag="pub")
        self.stamp(3)
        dq = self.wo_dma(0, SLOT0 + 65536, vOo, "wo") + self.wo_dma(1, SLOT0 + 65536, vOo, "wo")
        GB = self.vAcc
        ZB = 56
        gl = []
        for i in range(16):
            pre = f"s_add_u32 s{sT1}, s{sXR}, {(i >> 2)*4096}\n" if i % 4 == 0 else ""
            gl.append(pre + f"buffer_load_dwordx4 {v(GB+4*i,4)}, v{vKo}, s[{SWS}:{SWS+3}], s{sT1} offen offset:{(i&3)*1024} sc1")
        gl.insert(0, f"buffer_load_dwordx4 {v(ZB,4)}, v{vZo}, s[{SWS}:{SWS+3}], s{sXR} offen sc1")
        gq = list(gl)
        self.fill = self.gate_fin(-1) + [f"v_mov_b32 v{GG}, v{G0}", f"v_mov_b32 v{GG+1}, v{G0}", f"v_permlane32_swap_b32 v{GG}, v{GG+1}"]
        for s in range(32):
            if s == 14:
                p.wait_vm("st9"); p.barrier(lg=False)
            if s + 2 < 32: qreads(s + 2)
            fr = self.vFr + 4 * (s & 3)
            for rt in range(2):
                p(f"v_mfma_f32_32x32x16_bf16 {v(QA+16*rt,16)}, {v(fr,4)}, a[{8*s+4*rt}:{8*s+4*rt+3}], {v(QA+16*rt,16)}")
                if rt == 0 and dq: dq.pop(0)()
                elif s >= 23 and gq: p(gq.pop(0), tag="gat")
                else: self.filler(1)
        while gq: p(gq.pop(0), tag="gat")
        self.stamp(4)
        PQ = 224
        self.run(self.phi(QA, 32, vC, 60))
        self.run(self.pack(PQ, QA, 16))
        p.wait_vm("gat")
        p(f"s_mov_b32 s{sCNT}, 0\nL_gchkA:")
        p(f"v_max3_u32 v{T0}, v{ZB}, v{ZB+1}, v{ZB+2}\nv_max_u32 v{T0}, v{T0}, v{ZB+3}")
        for i in range(0, 64, 2): p(f"v_max3_u32 v{T0}, v{T0}, v{GB+i}, v{GB+i+1}")
        p(f"v_cmp_eq_u32 vcc, -1, v{T0}\ns_cbranch_vccnz L_gslowA\nL_gokA:")
        self.slow.append(f"L_gslowA:\ns_add_u32 s{sCNT}, s{sCNT}, 1\ns_cmp_gt_u32 s{sCNT}, {SPIN}\ns_cbranch_scc1 L_gokA\n" + "\n".join(gl) + "\ns_waitcnt vmcnt(0)\ns_branch L_gchkA")
        self.stamp(5)
        ZF = 40
        zf = []
        for j in range(4):
            zf += [f"v_lshlrev_b32 v{ZF+2*j}, 16, v{ZB+j}", f"v_and_b32 v{ZF+2*j+1}, 0xffff0000, v{ZB+j}"]
        for sh in (8, 4, 2, 1):
            for j in range(8): zf.append(f"v_add_f32_dpp v{ZF+j}, v{ZF+j}, v{ZF+j} row_ror:{sh} row_mask:0xf bank_mask:0xf")
        zf += self.pack(ZB, ZF, 4)
        zf += [f"""s_and_b32 s{sT0}, s{sN}, 3
        s_lshl_b32 s{sT0}, s{sT0}, 12
        s_lshl_b32 s{sT1}, s{sWC}, 11
        s_add_u32 s{sT0}, s{sT0}, s{sT1}
        s_add_u32 s{sT0}, s{sT0}, 32768
        s_add_u32 s{sACT}, s{sACT}, s{sT0}
        s_add_u32 s{sT1}, s{sACT}, 98304"""]
        self.fill = zf
        for i in range(16):
            p(f"v_mfma_f32_32x32x16_bf16 {v(DKV,16)}, {v(SEL,4)}, {v(GB+4*i,4)}, {'0' if i == 0 else v(DKV,16)}")
            self.filler(4)
        self.flush_fill()
        KF = 48; A0 = 40; A1 = 44
        self.run(self.pack(KF, DKV, 4))
        for j in range(4): p(f"v_cndmask_b32 v{A0+j}, v{KF+j}, v{ZB+j}, {msk}")
        for j in range(4): p(f"v_cndmask_b32 v{A1+j}, v{ZB+j}, v{KF+j}, {msk}")
        DD = self.vAcc
        for rt in range(2):
            for hd in range(2):
                p(f"v_mfma_f32_32x32x16_bf16 {v(DD+32*rt+16*hd,16)}, {v(A0+4*hd,4)}, {v(PQ+8*rt+4*hd,4)}, 0")
        for rt in range(2):
            for hd in range(2):
                d = DD + 32 * rt + 16 * hd
                num, den = d + 8 * hd, d + 8 * (1 - hd)
                p(f"v_add_f32 v{den}, {EPS:#x}, v{den}\nv_rcp_f32 v{den}, v{den}\nv_mul_f32 v{den}, v{den}, v{GG+rt}")
                for j in range(0, 8, 2): p(f"v_pk_mul_f32 {v(num+j,2)}, {v(num+j,2)}, {v(den,2)} op_sel:[0,0] op_sel_hi:[1,0]")
                self.run(self.pack(den + 4, num, 4))
                p(f"buffer_store_dwordx4 {v(den+4,4)}, v{self.vL16}, s[{SWS}:{SWS+3}], s{sT1 if rt else sACT} offen offset:{hd*1024} sc1", tag="act")
        self.stamp(6)
        p.barrier()
        dq = self.c_dma(0, self.vXo, "c0")
        wr_ = self.wo_reads(SLOT0 + 65536)
        for i, x in enumerate(wr_):
            if i % 8 == 0: dq.pop(0)()
            p(x)
        self.set_flag(1)
        self.stamp(7)
        self.run(dq)
        p.barrier()
        self.run(self.c_dma(1, self.vXo, "c1"))

    def phase2(self):
        p, c = self.p, self.c
        T0, T1, T2, T3 = self.vT0, self.vT1, self.vT2, self.vT3
        XD = 144; XL = 160; DL = 168; GL = 172; vO = 38; vRed = 39; vF = 176
        p(f"""
        v_lshrrev_b32 v{T0}, 4, v{self.vL}
        v_and_b32 v{T1}, 15, v{self.vL}
        v_lshlrev_b32 v{T2}, 3, v{T1}
        v_lshl_add_u32 v{T3}, v{T0}, 12, v{T2}
        s_lshl_b32 s{sT0}, s{sRB}, 16
        s_lshl_b32 s{sT1}, s{sWV}, 14
        s_add_u32 s{sT0}, s{sT0}, s{sT1}
        s_lshl_b32 s{sT1}, s{sCB}, 7
        s_add_u32 s{sT0}, s{sT0}, s{sT1}
        v_add_u32 v{T2}, s{sT1}, v{T2}
        """)
        for i in range(4):
            p(f"buffer_load_dwordx2 {v(XL+2*i,2)}, v{T3}, s[{SX}:{SX+3}], s{sT0} offen offset:{1024*i}", tag="xl")
        p(f"global_load_dwordx2 {v(DL,2)}, v{T2}, s[{kp(11)}:{kp(11)+1}]", tag="xl")
        p(f"""
        v_lshlrev_b32 v{vO}, 1, v{T3}
        s_lshl_b32 s{sXB}, s{sT0}, 1
        s_lshl_b32 s{sT0}, s{sWC}, 15
        """)
        self.run(self.frag_addrs(self.vXa, sT0, 0))
        p(f"""
        v_lshrrev_b32 v{T0}, 5, v{self.vL}
        v_lshlrev_b32 v{T0}, 10, v{T0}
        v_bfe_u32 v{T1}, v{self.vL}, 4, 1
        v_lshl_or_b32 v{T0}, v{T1}, 7, v{T0}
        v_bfe_u32 v{T1}, v{self.vL}, 3, 1
        v_lshl_or_b32 v{T0}, v{T1}, 12, v{T0}
        v_and_b32 v{T1}, 7, v{self.vL}
        v_lshl_or_b32 v{T0}, v{T1}, 4, v{T0}
        s_lshl_b32 s{sT0}, s{sWR}, 13
        s_lshl_b32 s{sT1}, s{sWC}, 11
        s_add_u32 s{sT0}, s{sT0}, s{sT1}
        v_add_u32 v{vRed}, s{sT0}, v{T0}
        s_mul_i32 s{sACT}, s{sRB}, 196608
        s_mul_i32 s{sT0}, s{sWV}, 49152
        s_add_u32 s{sACT}, s{sACT}, s{sT0}
        s_lshl_b32 s{sT0}, s{sRB}, 12
        s_lshl_b32 s{sT1}, s{sWC}, 11
        s_add_u32 s{sT0}, s{sT0}, s{sT1}
        s_add_u32 s{sWB}, s{sT0}, {FLAG}
        v_lshrrev_b32 v{T1}, 4, v{self.vL}
        v_lshlrev_b32 v{T0}, 7, v{self.vL}
        v_lshl_or_b32 v{vF}, v{T1}, 28, v{T0}
        v_lshlrev_b32 v{vF+1}, 4, v{T1}
        s_lshl_b32 s{sT0}, s{sWC}, 13
        s_lshl_b32 s{sT1}, s{sRB}, 8
        s_add_u32 s{sT0}, s{sT0}, s{sT1}
        s_lshl_b32 s{sT1}, s{sWV}, 6
        s_add_u32 s{sT0}, s{sT0}, s{sT1}
        s_add_u32 s{sXR}, s{sT0}, {GOFF}
        """)
        p(f"v_lshlrev_b32 v{DL+2}, 16, v{DL+1}\nv_and_b32 v{DL+3}, 0xffff0000, v{DL+1}\nv_and_b32 v{DL+1}, 0xffff0000, v{DL}\nv_lshlrev_b32 v{DL}, 16, v{DL}")
        for i in range(4):
            for h in range(2):
                p(f"v_lshlrev_b32 v{XD+4*i+2*h}, 16, v{XL+2*i+h}\nv_and_b32 v{XD+4*i+2*h+1}, 0xffff0000, v{XL+2*i+h}")
                p(f"v_pk_mul_f32 {v(XD+4*i+2*h,2)}, {v(XD+4*i+2*h,2)}, {v(DL+2*h,2)}")
        p.wait_all(vm=True)
        p.barrier()
        self.stamp(8)
        p(f"""s_mov_b32 s{sCNT}, 0
        L_poll:
        buffer_load_dword v{T0}, v{vF}, s[{SWS}:{SWS+3}], s{sWB} offen sc1
        s_add_u32 s{sCNT}, s{sCNT}, 1
        s_cmp_gt_u32 s{sCNT}, {SPIN}
        s_cselect_b32 s{sT0}, 0, -1
        v_cmp_ne_u32 vcc, 0, v{T0}
        s_and_b32 s{sT0}, s{sT0}, vcc_lo
        s_cbranch_scc1 L_poll""")
        self.stamp(9)
        NPF = 14
        def aload(i):
            if i % 4 == 0: p(f"s_add_u32 s{sT1}, s{sACT}, {i*1024}")
            r = 128 + 4 * (i % 32)
            p(f"buffer_load_dwordx4 a[{r}:{r+3}], v{self.vL16}, s[{SWS}:{SWS+3}], s{sT1} offen offset:{(i&3)*1024} sc1", tag="a")
        def creads(i):
            np_, wc, cc, ss = i >> 3, (i >> 2) & 1, (i >> 1) & 1, i & 1
            fr = self.vFr + 8 * (i % 3)
            for ct in range(2):
                p(f"ds_read_b128 {v(fr+4*ct,4)}, v{self.vXa + 4*(np_>>1) + 2*wc + ss} offset:{((np_&1)*2+cc)*8192 + ct*4096}")
        for i in range(NPF): aload(i)
        creads(0); creads(1)
        for i in range(48):
            if i + 2 < 32: creads(i + 2)
            r = 128 + 4 * (i % 32)
            for ct in range(2):
                b = v(self.vFr + 8 * (i % 3) + 4 * ct, 4) if i < 32 else a(8 * (i - 32) + 4 * ct, 4)
                acc = v(self.vAcc + 16 * ct, 16)
                p(f"v_mfma_f32_32x32x16_bf16 {acc}, a[{r}:{r+3}], {b}, {acc if i else '0'}")
                if ct == 0 and i + NPF < 48: aload(i + NPF)
                if ct == 0 and i + NPF == 48:
                    p(f"buffer_load_dwordx4 {v(GL,4)}, v{vF+1}, s[{SWS}:{SWS+3}], s{sXR} offen sc1", tag="g")
        self.stamp(10)
        p(f"s_lshl_b32 s{sT0}, s{sWC}, 14\ns_lshl_b32 s{sT1}, s{sWR}, 13\ns_add_u32 m0, s{sT0}, s{sT1}")
        for j in range(32):
            p(f"ds_write_addtid_b32 v{self.vAcc+j} offset:{256*j}")
        p.barrier()
        R0 = 96
        for i in range(4):
            for kh in range(2):
                p(f"ds_read_b128 {v(R0+8*i+4*kh,4)}, v{vRed} offset:{kh*16384 + i*256}")
        p(f"s_add_u32 s{sT1}, s{sXB}, 4096")
        for i in range(4):
            g2 = v(GL + (i & 2), 2); o = i & 1
            for h in (0, 2):
                p(f"v_pk_fma_f32 {v(XD+4*i+h,2)}, {v(XD+4*i+h,2)}, {g2}, {v(R0+8*i+h,2)} op_sel:[0,{o},0] op_sel_hi:[1,{o},1]")
            for h in (0, 2):
                p(f"v_pk_add_f32 {v(XD+4*i+h,2)}, {v(XD+4*i+h,2)}, {v(R0+8*i+4+h,2)}")
            p(f"buffer_store_dwordx4 {v(XD+4*i,4)}, v{vO}, s[{SOUT}:{SOUT+3}], s{sT1 if i >= 2 else sXB} offen offset:{(i&1)*2048} {c.out_flags}", tag="out")
        if c.stamps:
            self.stamp(11)
            p.wait_all(vm=True)
            self.stamp(12)
            p(f"""s_lshl_b32 s{sT0}, s2, 8
            s_lshl_b32 s{sT1}, s{sWV}, 6
            s_add_u32 s{sT0}, s{sT0}, s{sT1}
            s_add_u32 s{sT0}, s{sT0}, {STAMP}
            v_lshrrev_b32 v{T1}, 4, v{self.vL}
            v_lshlrev_b32 v{T0}, 2, v{self.vL}
            v_lshl_or_b32 v{T0}, v{T1}, 28, v{T0}
            buffer_store_dword v255, v{T0}, s[{SWS}:{SWS+3}], s{sT0} offen""")

    def build(self):
        p = self.p
        hdr = open("gated_mix__linear_attn_block__ssm_conv_s5__prompt.s.ref").read().split("\n")
        for l in hdr:
            if l.startswith("; @launch"): break
            p.raw(l)
        p.raw("; @launch grid=(256,1,1) block=(256,1,1) lds=163840")
        p.raw('.amdgcn_target "amdgcn-amd-amdhsa--gfx950"\n.text')
        p.raw(f".globl {KN}\n.p2align 8\n.type {KN},@function\n{KN}:")
        self.prologue()
        st = p.save()
        self.roleS()
        p.wait_all(lg=True)
        p("s_branch L_p2")
        stS = p.save()
        p.restore(st)
        p.label("L_roleA")
        self.roleA()
        p.wait_all(lg=True)
        p("s_nop 7\nL_p2:")
        assert all(not d for _, d in stS[0]) and all(not d for _, d in p.vm)
        p.vm = []
        self.phase2()
        p("L_end:\ns_endpgm")
        for sl in self.slow:
            for l in sl.split("\n"): p.raw("    " + l.strip() if not l.strip().endswith(":") else l.strip())
        p.raw('.section .rodata,"a"')
        p.raw(f""".p2align 6
.amdhsa_kernel {KN}
  .amdhsa_next_free_vgpr 512
  .amdhsa_next_free_sgpr 102
  .amdhsa_accum_offset 256
  .amdhsa_group_segment_fixed_size 0
  .amdhsa_kernarg_size 128
  .amdhsa_user_sgpr_count 2
  .amdhsa_user_sgpr_kernarg_segment_ptr 1
  .amdhsa_system_sgpr_workgroup_id_x 1
  .amdhsa_float_denorm_mode_32 3
.end_amdhsa_kernel""")
        return p.text()

if __name__ == "__main__":
    out = sys.argv[1] if len(sys.argv) > 1 else "gated_mix__linear_attn_block__ssm_conv_s5__prompt.s"
    kw = {}
    for x in sys.argv[2:]:
        k, val = x.split("=")
        kw[k] = eval(val)
    open(out, "w").write(Gen(Cfg(**kw)).build())
```

```python
import sys, gen
def diag(j, mult, ty=None, mode="max", **kw):
    txt = gen.Gen(gen.Cfg(stamps=True, **kw)).build()
    txt = txt.replace("; @launch grid=(256,1,1) block=(256,1,1) lds=163840", "; @launch kernel=%s grid=(256,1,1) block=(256,1,1) lds=163840\n; @launch kernel=diag_kernel grid=(1,1,1) block=(64,1,1) lds=0" % gen.KN)
    k = [".globl diag_kernel\n.p2align 8\n.type diag_kernel,@function\ndiag_kernel:",
         "s_cmp_ge_u32 s2, 1\ns_cbranch_scc1 L_dend", "s_load_dwordx2 s[4:5], s[0:1], 120\ns_waitcnt lgkmcnt(0)",
         "s_mov_b32 s8, s4\ns_mov_b32 s9, s5\ns_mov_b32 s10, 0x700000\ns_mov_b32 s11, 0x20000",
         "v_lshlrev_b32 v1, 6, v0\nv_mov_b32 v2, -1\nv_mov_b32 v3, %d" % (0 if mode == "max" else -1)]
    for i in range(16):
        k.append(f"s_mov_b32 s12, {gen.STAMP + i*4096}\nbuffer_load_dword v4, v1, s[8:11], s12 offen\nbuffer_load_dword v5, v1, s[8:11], s12 offen offset:{4*j}\ns_waitcnt vmcnt(0)\nv_min_u32 v2, v2, v4")
        if ty is None or ((i >> 2) & 1) == ty:
            k.append(f"v_{mode}_u32 v3, v3, v5")
    k.append("s_nop 4\nv_readlane_b32 s14, v2, 0\nv_readlane_b32 s15, v3, 0")
    for l in range(1, 64):
        k.append(f"v_readlane_b32 s16, v2, {l}\nv_readlane_b32 s17, v3, {l}\ns_nop 1\ns_min_u32 s14, s14, s16\ns_{mode}_u32 s15, s15, s17")
    k.append(f"""s_sub_u32 s15, s15, s14
s_min_u32 s15, s15, 10000
s_mul_i32 s15, s15, {mult}
s_memrealtime s[18:19]
s_waitcnt lgkmcnt(0)
L_dspin:
s_memrealtime s[20:21]
s_waitcnt lgkmcnt(0)
s_sub_u32 s22, s20, s18
s_cmp_lt_u32 s22, s15
s_cbranch_scc1 L_dspin
L_dend:
s_endpgm""")
    txt = txt.replace('.section .rodata,"a"', "\n".join(k) + '\n.section .rodata,"a"', 1)
    txt += ".p2align 6\n.amdhsa_kernel diag_kernel\n .amdhsa_next_free_vgpr 8\n .amdhsa_next_free_sgpr 32\n .amdhsa_accum_offset 8\n .amdhsa_user_sgpr_count 2\n .amdhsa_user_sgpr_kernarg_segment_ptr 1\n .amdhsa_system_sgpr_workgroup_id_x 1\n.end_amdhsa_kernel\n"
    return txt
if __name__ == "__main__":
    for i, a in enumerate(sys.argv[1:]):
        open(f"d{i}.s", "w").write(diag(**eval("dict(%s)" % a)))
```

```python
import sys, gen
def mk(order, grid=1, **kw):
    txt = gen.Gen(gen.Cfg(**kw)).build()
    L = []
    for ch in order:
        if ch == "M": L.append("; @launch kernel=%s grid=(256,1,1) block=(256,1,1) lds=163840" % gen.KN)
        else: L.append("; @launch kernel=e_kernel grid=(%d,1,1) block=(64,1,1) lds=0" % grid)
    txt = txt.replace("; @launch grid=(256,1,1) block=(256,1,1) lds=163840", "\n".join(L))
    k = ".globl e_kernel\n.p2align 8\n.type e_kernel,@function\ne_kernel:\ns_endpgm\n"
    if "e" in order:
        txt = txt.replace('.section .rodata,"a"', k + '.section .rodata,"a"', 1)
        txt += ".p2align 6\n.amdhsa_kernel e_kernel\n .amdhsa_next_free_vgpr 8\n .amdhsa_next_free_sgpr 32\n .amdhsa_accum_offset 8\n .amdhsa_user_sgpr_count 2\n .amdhsa_user_sgpr_kernarg_segment_ptr 1\n .amdhsa_system_sgpr_workgroup_id_x 1\n.end_amdhsa_kernel\n"
    return txt
for i, o in enumerate(["M", "eM", "Me", "eeM", "MM"]):
    open(f"l{i}.s", "w").write(mk(o))
```
